```python
import torch

def _softmax(x, axis=-1):
    return torch.softmax(x, dim=axis)
def _gelu(x):
    return torch.nn.functional.gelu(x, approximate="tanh")
def _silu(x):
    return torch.nn.functional.silu(x)
def _sigmoid(x):
    return torch.sigmoid(x)
def _layernorm(x, axis=-1, eps=1e-5):
    m = x.mean(dim=axis, keepdim=True)
    v = x.var(dim=axis, keepdim=True, unbiased=False)
    return (x - m) / torch.sqrt(v + eps)
def _scatter_add(tgt, idx, src, axis=0):
    return tgt.clone().index_add_(axis, idx, src)
def _segment_sum(src, seg, n):
    out = torch.zeros((n,) + src.shape[1:], dtype=src.dtype)
    return out.index_add_(0, seg, src)
def _pad(x, pw):
    flat = tuple(v for pair in reversed(pw) for v in pair)
    return torch.nn.functional.pad(x, flat)

kernel_name = 'standalone__mha_block_cached__near_ridge'

def setup_inputs():

    _w = (lambda a: (lambda t: t.to(torch.bfloat16) if t.is_floating_point() else t)(torch.as_tensor(a)))
    B, Sq, D = 16, 32, 1024
    H, Sk, Dh = 32, 32, 128
    return {
        "x": _w((lambda *s: torch.randn(*s, dtype=torch.bfloat16) * 0.8)(B, Sq, D)),
        "k_cache": _w((lambda *s: torch.randn(*s, dtype=torch.bfloat16) * 0.8)(B, H, Sk, Dh)),
        "v_cache": _w((lambda *s: torch.randn(*s, dtype=torch.bfloat16) * 0.05)(B, H, Sk, Dh)),
        "wq": _w((lambda *s: torch.randn(*s, dtype=torch.bfloat16) * 0.8)(D, H * Dh) * (D ** -0.5)),
        "wo": _w((lambda *s: torch.randn(*s, dtype=torch.bfloat16) * 0.05)(H * Dh, D) * ((H * Dh) ** -0.5)),
    }

def reference(x, k_cache, v_cache, wq, wo):
    B, Sq, D = x.shape
    H, Dh = 32, 128
    q = (lambda x, *d: x.permute(*d))((x @ wq).reshape(B, Sq, H, Dh), 0, 2, 1, 3)
    scores = torch.einsum("bhqd,bhkd->bhqk", q, k_cache) * (Dh ** -0.5)
    p = _softmax(scores, axis=-1)
    o = torch.einsum("bhqk,bhkd->bhqd", p, v_cache)
    return (lambda x, *d: x.permute(*d))(o, 0, 2, 1, 3).reshape(B, Sq, H * Dh) @ wo
```

```python
import sys
L=[]
def e(s): L.append("    "+s)
def lab(s): L.append(s+":")

STAGE=24576; NST=4; KV=NST*STAGE

def gemm_core(SA, SW, attn):
    e("v_and_b32 v1, 63, v0")
    e("v_lshrrev_b32 v2, 6, v0")
    e("s_nop 0")
    e("v_readfirstlane_b32 s28, v2")
    e("s_nop 3")
    e("s_lshl_b32 s32, s28, 11      ; w*2048 (X lds)")
    e("s_lshl_b32 s33, s28, 12      ; w*4096 (W lds)")
    e("v_lshrrev_b32 v2, 3, v1       ; i>>3")
    e("v_lshrrev_b32 v3, 4, v1       ; i>>4")
    e("v_and_b32 v4, 7, v1")
    e("v_xor_b32 v4, v4, v3          ; (i&7)^(i>>4)")
    e("s_lshl_b32 s34, s28, 4        ; 16w")
    e("v_add_u32 v2, s34, v2")
    e("s_mov_b32 s35, %d"%SA)
    e("v_mul_lo_u32 v2, v2, s35")
    e("v_lshl_add_u32 v10, v4, 4, v2   ; vx0")
    e("v_add_u32 v10, s30, v10")
    e("v_xor_b32 v11, 64, v10")
    e("v_add_u32 v11, %d, v11         ; vx1"%(8*SA))
    e("v_and_b32 v4, 15, v1")
    e("v_lshlrev_b32 v5, 2, v3")
    e("v_xor_b32 v4, v4, v5          ; (i&15)^((i>>4)<<2)")
    e("s_lshl_b32 s34, s28, 4")
    e("v_add_u32 v5, s34, v3")
    e("s_mov_b32 s35, %d"%SW)
    e("v_mul_lo_u32 v5, v5, s35")
    e("v_lshl_add_u32 v12, v4, 4, v5")
    e("v_add_u32 v12, s31, v12        ; vw")
    if attn:
        pass
    e("s_and_b32 s36, s28, 1          ; qb")
    e("s_lshr_b32 s37, s28, 1         ; dh")
    e("v_and_b32 v2, 31, v1")
    e("v_lshrrev_b32 v3, 5, v1        ; hi")
    e("v_lshrrev_b32 v4, 1, v2")
    e("v_and_b32 v4, 7, v4")
    e("v_xor_b32 v4, v4, v3           ; t")
    e("s_lshl_b32 s38, s36, 12        ; qb*32*128")
    e("v_lshlrev_b32 v5, 7, v2")
    e("v_add_u32 v5, s38, v5")
    for kk in range(4):
        e("v_xor_b32 v6, %d, v4"%(kk<<1))
        e("v_lshl_add_u32 v%d, v6, 4, v5"%(16+kk))
        e("v_add_u32 v%d, %d, v%d"%(20+kk, 2*STAGE, 16+kk))
    e("v_lshrrev_b32 v2, 4, v1        ; g")
    e("v_and_b32 v3, 15, v1           ; i")
    e("v_lshrrev_b32 v4, 1, v2        ; g>>1")
    e("v_lshlrev_b32 v4, 3, v4")
    e("v_lshrrev_b32 v5, 2, v3        ; i>>2")
    e("v_add_u32 v4, v4, v5           ; krow0")
    e("v_and_b32 v6, 1, v2")
    e("v_lshlrev_b32 v6, 1, v6        ; (g&1)*2")
    e("v_bfe_u32 v7, v3, 1, 1         ; (i&3)>>1")
    e("v_add_u32 v6, v6, v7")
    e("s_lshl_b32 s38, s37, 3         ; dh*8")
    e("v_add_u32 v6, s38, v6          ; chunk")
    e("v_lshlrev_b32 v5, 2, v5")
    e("v_xor_b32 v6, v6, v5           ; slot")
    e("v_lshlrev_b32 v6, 4, v6")
    e("v_and_b32 v7, 1, v3")
    e("v_lshl_add_u32 v6, v7, 3, v6")
    e("v_lshl_add_u32 v6, v4, 8, v6")
    e("v_add_u32 v24, 8192, v6        ; j=0 lo")
    e("v_xor_b32 v25, 64, v24         ; j=1 lo")
    e("v_add_u32 v26, %d, v24"%(2*STAGE))
    e("v_add_u32 v27, %d, v25"%(2*STAGE))
    for r in range(64,96): e("v_mov_b32 v%d, 0"%r)

def dma_tile(kt, SW):
    st=(kt%NST)*STAGE
    for ee in range(2):
        e("s_add_u32 m0, s32, %d"%(st+ee*1024))
        e("s_mov_b32 s40, %d"%(kt*128))
        e("buffer_load_dwordx4 v%d, s[8:11], s40 offen lds"%(10+ee))
    for jj in range(4):
        e("s_add_u32 m0, s33, %d"%(st+8192+jj*1024))
        e("s_mov_b32 s40, %d"%((kt*64+jj*4)*SW))
        e("buffer_load_dwordx4 v12, s[12:15], s40 offen lds")

def gemm_loop(SW, npre):
    for kt in range(3): dma_tile(kt,SW)
    for kt in range(16):
        rem=min(15-kt,2)
        e("s_waitcnt vmcnt(%d)"%(rem*6))
        e("s_barrier")
        if kt+3<16: dma_tile(kt+3,SW)
        st=kt%NST; hi=st>>1; off=(st&1)*STAGE
        def rd(kk,p):
            b=32+12*p
            e("ds_read_b128 v[%d:%d], v%d offset:%d"%(b,b+3,16+4*hi+kk,off))
            for j in range(2):
                for t in range(2):
                    e("ds_read_b64_tr_b16 v[%d:%d], v%d offset:%d"%(b+4+4*j+2*t,b+5+4*j+2*t,24+2*hi+j,off+(kk*16+t*4)*256))
        rd(0,0)
        for kk in range(4):
            p=kk&1
            if kk<3: rd(kk+1,p^1)
            e("s_waitcnt lgkmcnt(%d)"%(5 if kk<3 else 0))
            b=32+12*p
            for j in range(2):
                e("v_mfma_f32_32x32x16_bf16 v[%d:%d], v[%d:%d], v[%d:%d], v[%d:%d]"%(64+16*j,79+16*j,b+4+4*j,b+7+4*j,b,b+3,64+16*j,79+16*j))

def srd(d, src, nbytes):
    e("s_mov_b32 s%d, s%d"%(d,src)); e("s_mov_b32 s%d, s%d"%(d+1,src+1))
    e("s_mov_b32 s%d, %d"%(d+2,nbytes)); e("s_mov_b32 s%d, 0x00020000"%(d+3))

def header(name):
    L.append(".globl %s"%name); L.append(".p2align 8"); L.append(".type %s,@function"%name); lab(name)

header("mha_qattn_kernel")
e("s_cmp_ge_u32 s2, 256"); e("s_cbranch_scc1 L1_done")
e("s_load_dwordx4 s[44:47], s[0:1], 0     ; x, k")
e("s_load_dwordx4 s[48:51], s[0:1], 16    ; v, wq")
e("s_load_dwordx2 s[52:53], s[0:1], 56    ; ws")
e("s_and_b32 s3, s2, 7"); e("s_lshl_b32 s3, s3, 2"); e("s_bfe_u32 s4, s2, 0x20003"); e("s_add_u32 s3, s3, s4   ; head")
e("s_lshr_b32 s4, s2, 5   ; rb")
e("s_waitcnt lgkmcnt(0)")
srd(8,44,1048576); srd(12,50,8388608); srd(16,46,4194304); srd(20,48,4194304); srd(24,52,4194304)
e("s_lshl_b32 s30, s4, 17     ; rb*64*2048")
e("s_lshl_b32 s31, s3, 8      ; head*128*2")
gemm_core(2048,8192,True)
e("v_lshrrev_b32 v2, 4, v1        ; i>>4 (key&3)")
e("v_and_b32 v3, 15, v1           ; slot")
e("s_lshl_b32 s38, s4, 1"); e("s_add_u32 s38, s38, s37")
e("s_lshl_b32 s38, s38, 5"); e("s_add_u32 s38, s38, s3"); e("s_lshl_b32 s38, s38, 13   ; (b*32+h)*8192")
e("s_lshl_b32 s39, s28, 13"); e("s_add_u32 s39, s39, %d    ; lds dest: KV + w*8192"%KV)
e("s_cmp_eq_u32 s36, 0"); e("s_cbranch_scc0 L1_vload")
for j in range(8):
    e("v_add_u32 v4, %d, v2"%((4*j)&15))
    e("v_xor_b32 v4, v3, v4")
    e("v_lshlrev_b32 v4, 4, v4")
    e("v_lshl_add_u32 v4, v2, 8, v4")
    e("s_add_u32 m0, s39, %d"%(j*1024))
    e("s_add_u32 s40, s38, %d"%(j*1024))
    e("buffer_load_dwordx4 v4, s[16:19], s40 offen lds")
e("s_branch L1_kvdone")
lab("L1_vload")
e("v_lshlrev_b32 v4, 2, v2"); e("v_xor_b32 v4, v3, v4"); e("v_lshlrev_b32 v4, 4, v4"); e("v_lshl_add_u32 v4, v2, 8, v4")
for j in range(8):
    e("s_add_u32 m0, s39, %d"%(j*1024))
    e("s_add_u32 s40, s38, %d"%(j*1024))
    e("buffer_load_dwordx4 v4, s[20:23], s40 offen lds")
lab("L1_kvdone")
gemm_loop(8192,8)
e("s_nop 7"); e("s_nop 7")
for j in range(2):
    for s in range(2):
        for c in range(4):
            r=64+16*j+8*s+2*c
            e("v_cvt_pk_bf16_f32 v%d, v%d, v%d"%(32+8*j+4*s+c,r,r+1))
e("v_and_b32 v2, 31, v1"); e("v_lshrrev_b32 v3, 5, v1   ; h")
e("v_and_b32 v4, 15, v2"); e("s_lshl_b32 s38, s37, 3"); e("v_xor_b32 v4, s38, v4"); e("v_lshlrev_b32 v4, 4, v4")
e("v_lshl_add_u32 v4, v2, 8, v4"); e("v_lshl_add_u32 v4, v3, 3, v4")
e("s_lshl_b32 s38, s36, 14"); e("s_add_u32 s38, s38, %d"%KV); e("v_add_u32 v4, s38, v4")
for c in range(8):
    e("v_xor_b32 v5, %d, v4"%(c*16))
    e("ds_read_b64 v[%d:%d], v5"%(64+2*c,65+2*c))
for r in range(16): e("v_mov_b32 v%d, 0"%(96+r))
e("s_waitcnt lgkmcnt(0)")
for st in range(4):
    e("v_mfma_f32_32x32x16_bf16 v[96:111], v[%d:%d], v[%d:%d], v[96:111]"%(64+4*st,67+4*st,32+4*st,35+4*st))
e("s_nop 7"); e("s_nop 7")
e("s_barrier")
e("s_lshl_b32 s38, s28, 12"); e("v_lshlrev_b32 v5, 6, v1"); e("v_add_u32 v6, s38, v5")
for i in range(4): e("ds_write_b128 v6, v[%d:%d] offset:%d"%(96+4*i,99+4*i,16*i))
e("s_xor_b32 s38, s28, 2"); e("s_lshl_b32 s38, s38, 12"); e("v_add_u32 v6, s38, v5")
e("s_waitcnt lgkmcnt(0)"); e("s_barrier")
for i in range(4): e("ds_read_b128 v[%d:%d], v6 offset:%d"%(64+4*i,67+4*i,16*i))
e("s_waitcnt lgkmcnt(0)")
e("s_mov_b32 s38, 0x3db504f3   ; 128^-0.5")
e("s_mov_b32 s39, 0x3fb8aa3b   ; log2e")
e("s_mov_b32 s41, 0xffff0000")
for r in range(16): e("v_add_f32 v%d, v%d, v%d"%(96+r,96+r,64+r))
for r in range(0,16,2):
    e("v_cvt_pk_bf16_f32 v5, v%d, v%d"%(96+r,97+r))
    e("v_lshlrev_b32 v6, 16, v5"); e("v_and_b32 v7, s41, v5")
    e("v_mul_f32 v6, s38, v6"); e("v_mul_f32 v7, s38, v7")
    e("v_cvt_pk_bf16_f32 v5, v6, v7")
    e("v_lshlrev_b32 v%d, 16, v5"%(96+r)); e("v_and_b32 v%d, s41, v5"%(97+r))
e("v_max_f32 v5, v96, v97")
for r in range(2,16): e("v_max_f32 v5, v5, v%d"%(96+r))
e("v_mov_b32 v6, v5"); e("s_nop 1"); e("v_permlane32_swap_b32 v5, v6"); e("v_max_f32 v5, v5, v6")
for r in range(16):
    e("v_sub_f32 v%d, v%d, v5"%(96+r,96+r)); e("v_mul_f32 v%d, s39, v%d"%(96+r,96+r)); e("v_exp_f32 v%d, v%d"%(96+r,96+r))
e("s_nop 0")
e("v_add_f32 v5, v96, v97")
for r in range(2,16): e("v_add_f32 v5, v5, v%d"%(96+r))
e("v_mov_b32 v6, v5"); e("s_nop 1"); e("v_permlane32_swap_b32 v5, v6"); e("v_add_f32 v5, v5, v6")
e("v_rcp_f32 v5, v5"); e("s_nop 0")
for r in range(16): e("v_mul_f32 v%d, v%d, v5"%(96+r,96+r))
for c in range(8): e("v_cvt_pk_bf16_f32 v%d, v%d, v%d"%(32+c,96+2*c,97+2*c))
e("v_lshrrev_b32 v2, 4, v1"); e("v_and_b32 v3, 15, v1")
e("v_lshrrev_b32 v4, 1, v2"); e("v_lshlrev_b32 v4, 2, v4"); e("v_lshrrev_b32 v5, 2, v3"); e("v_add_u32 v4, v4, v5   ; key")
e("v_and_b32 v6, 1, v2"); e("v_lshlrev_b32 v6, 1, v6"); e("v_bfe_u32 v7, v3, 1, 1"); e("v_add_u32 v6, v6, v7")
e("s_lshl_b32 s38, s37, 3"); e("v_add_u32 v6, s38, v6"); e("v_lshlrev_b32 v5, 2, v5"); e("v_xor_b32 v6, v6, v5")
e("v_lshlrev_b32 v6, 4, v6"); e("v_and_b32 v7, 1, v3"); e("v_lshl_add_u32 v6, v7, 3, v6"); e("v_lshl_add_u32 v6, v4, 8, v6")
e("s_lshl_b32 s38, s36, 14"); e("s_add_u32 s38, s38, %d"%(KV+8192)); e("v_add_u32 v6, s38, v6"); e("v_xor_b32 v7, 64, v6")
for j in range(2):
    for s in range(2):
        for t in range(2):
            r=64+8*j+4*s+2*t
            e("ds_read_b64_tr_b16 v[%d:%d], v%d offset:%d"%(r,r+1,6+j,(16*s+8*t)*256))
for r in range(32): e("v_mov_b32 v%d, 0"%(96+r))
e("s_waitcnt lgkmcnt(0)")
for j in range(2):
    for s in range(2):
        r=64+8*j+4*s
        e("v_mfma_f32_32x32x16_bf16 v[%d:%d], v[%d:%d], v[%d:%d], v[%d:%d]"%(96+16*j,111+16*j,r,r+3,32+4*s,35+4*s,96+16*j,111+16*j))
e("v_and_b32 v2, 31, v1"); e("v_lshrrev_b32 v3, 5, v1")
e("s_lshl_b32 s38, s4, 6"); e("s_lshl_b32 s39, s36, 5"); e("s_add_u32 s38, s38, s39"); e("v_add_u32 v2, s38, v2")
e("v_lshlrev_b32 v2, 13, v2"); e("v_lshl_add_u32 v2, v3, 3, v2")
e("s_lshl_b32 s38, s3, 8"); e("s_lshl_b32 s39, s37, 7"); e("s_add_u32 s38, s38, s39"); e("v_add_u32 v2, s38, v2")
e("s_nop 7"); e("s_nop 3")
for j in range(2):
    for q4 in range(4):
        r=96+16*j+4*q4
        e("v_cvt_pk_bf16_f32 v%d, v%d, v%d"%(r,r,r+1)); e("v_cvt_pk_bf16_f32 v%d, v%d, v%d"%(r+1,r+2,r+3))
        e("buffer_store_dwordx2 v[%d:%d], v2, s[24:27], 0 offen offset:%d"%(r,r+1,j*64+q4*16))
lab("L1_done"); e("s_endpgm")

header("mha_oproj_kernel")
e("s_cmp_ge_u32 s2, 256"); e("s_cbranch_scc1 L2_done")
e("s_load_dwordx2 s[44:45], s[0:1], 32    ; wo")
e("s_load_dwordx2 s[52:53], s[0:1], 56    ; ws")
e("s_bfe_u32 s5, s2, 0x20001   ; split"); e("s_and_b32 s3, s2, 1"); e("s_lshl_b32 s3, s3, 2"); e("s_bfe_u32 s4, s2, 0x20003"); e("s_add_u32 s3, s3, s4   ; nb")
e("s_lshr_b32 s4, s2, 5   ; rb")
e("s_waitcnt lgkmcnt(0)")
srd(8,52,4194304); srd(12,44,8388608)
e("s_add_u32 s52, s52, 0x400000"); e("s_addc_u32 s53, s53, 0")
srd(24,52,8388608)
e("s_lshl_b32 s30, s4, 19"); e("s_lshl_b32 s38, s5, 11"); e("s_add_u32 s30, s30, s38")
e("s_lshl_b32 s31, s5, 21"); e("s_lshl_b32 s38, s3, 8"); e("s_add_u32 s31, s31, s38")
gemm_core(8192,2048,False)
gemm_loop(2048,0)
e("v_and_b32 v2, 31, v1"); e("v_lshrrev_b32 v3, 5, v1")
e("s_lshl_b32 s38, s4, 6"); e("s_lshl_b32 s39, s36, 5"); e("s_add_u32 s38, s38, s39"); e("v_add_u32 v2, s38, v2")
e("v_lshlrev_b32 v2, 12, v2"); e("v_lshl_add_u32 v2, v3, 4, v2")
e("s_lshl_b32 s38, s5, 21"); e("s_lshl_b32 s39, s3, 9"); e("s_add_u32 s38, s38, s39"); e("s_lshl_b32 s39, s37, 8"); e("s_add_u32 s38, s38, s39"); e("v_add_u32 v2, s38, v2")
e("s_nop 7"); e("s_nop 3")
for j in range(2):
    for q4 in range(4):
        r=64+16*j+4*q4
        e("buffer_store_dwordx4 v[%d:%d], v2, s[24:27], 0 offen offset:%d"%(r,r+3,j*128+q4*32))
lab("L2_done"); e("s_endpgm")

header("mha_reduce_kernel")
e("s_cmp_ge_u32 s2, 256"); e("s_cbranch_scc1 L3_done")
e("s_load_dwordx2 s[44:45], s[0:1], 40    ; out")
e("s_load_dwordx2 s[52:53], s[0:1], 56    ; ws")
e("s_lshl_b32 s3, s2, 8"); e("v_add_u32 v1, s3, v0")
e("s_waitcnt lgkmcnt(0)")
e("s_add_u32 s52, s52, 0x400000"); e("s_addc_u32 s53, s53, 0")
srd(8,52,8388608); srd(12,44,1048576)
e("v_lshlrev_b32 v2, 5, v1"); e("v_lshlrev_b32 v3, 4, v1")
for s in range(4):
    e("s_mov_b32 s4, %d"%(s<<21))
    e("buffer_load_dwordx4 v[%d:%d], v2, s[8:11], s4 offen"%(8+8*s,11+8*s))
    e("buffer_load_dwordx4 v[%d:%d], v2, s[8:11], s4 offen offset:16"%(12+8*s,15+8*s))
e("s_waitcnt vmcnt(0)")
for i in range(8):
    e("v_add_f32 v%d, v%d, v%d"%(8+i,8+i,16+i)); e("v_add_f32 v%d, v%d, v%d"%(24+i,24+i,32+i)); e("v_add_f32 v%d, v%d, v%d"%(8+i,8+i,24+i))
for i in range(4): e("v_cvt_pk_bf16_f32 v%d, v%d, v%d"%(40+i,8+2*i,9+2*i))
e("buffer_store_dwordx4 v[40:43], v3, s[12:15], 0 offen")
lab("L3_done"); e("s_endpgm")

def kd(name,vg):
    return """.amdhsa_kernel %s
  .amdhsa_next_free_vgpr %d
  .amdhsa_next_free_sgpr 64
  .amdhsa_accum_offset %d
  .amdhsa_group_segment_fixed_size 0
  .amdhsa_kernarg_size 64
  .amdhsa_user_sgpr_count 2
  .amdhsa_user_sgpr_kernarg_segment_ptr 1
  .amdhsa_system_sgpr_workgroup_id_x 1
.end_amdhsa_kernel
"""%(name,vg,vg)
out="""; MHA block: Q-proj+attention (kernel 1), split-K out-proj (kernel 2), reduce (kernel 3)
; @launch kernel=mha_qattn_kernel grid=(256,1,1) block=(256,1,1) lds=131072
; @launch kernel=mha_oproj_kernel grid=(256,1,1) block=(256,1,1) lds=98304
; @launch kernel=mha_reduce_kernel grid=(256,1,1) block=(256,1,1) lds=0
.amdgcn_target "amdgcn-amd-amdhsa--gfx950"
.text
"""+"\n".join(L)+"\n.section .rodata,\"a\"\n.p2align 6\n"+kd("mha_qattn_kernel",128)+".p2align 6\n"+kd("mha_oproj_kernel",128)+".p2align 6\n"+kd("mha_reduce_kernel",64)
open("standalone__mha_block_cached__near_ridge.s","w").write(out)
```

```python
import sys
L=[]
def e(s): L.append("    "+s)
def lab(s): L.append(s+":")

STAGE=24576; NST=4; KV=NST*STAGE

def gemm_core(SA, SW, attn):
    e("v_and_b32 v1, 63, v0")
    e("v_lshrrev_b32 v2, 6, v0")
    e("s_nop 0")
    e("v_readfirstlane_b32 s28, v2")
    e("s_nop 3")
    e("s_lshl_b32 s32, s28, 11      ; w*2048 (X lds)")
    e("s_lshl_b32 s33, s28, 12      ; w*4096 (W lds)")
    e("v_lshrrev_b32 v2, 3, v1       ; i>>3")
    e("v_lshrrev_b32 v3, 4, v1       ; i>>4")
    e("v_and_b32 v4, 7, v1")
    e("v_xor_b32 v4, v4, v3          ; (i&7)^(i>>4)")
    e("s_lshl_b32 s34, s28, 4        ; 16w")
    e("v_add_u32 v2, s34, v2")
    e("s_mov_b32 s35, %d"%SA)
    e("v_mul_lo_u32 v2, v2, s35")
    e("v_lshl_add_u32 v10, v4, 4, v2   ; vx0")
    e("v_add_u32 v10, s30, v10")
    e("v_xor_b32 v11, 64, v10")
    e("v_add_u32 v11, %d, v11         ; vx1"%(8*SA))
    e("v_and_b32 v4, 15, v1")
    e("v_lshlrev_b32 v5, 2, v3")
    e("v_xor_b32 v4, v4, v5          ; (i&15)^((i>>4)<<2)")
    e("s_lshl_b32 s34, s28, 4")
    e("v_add_u32 v5, s34, v3")
    e("s_mov_b32 s35, %d"%SW)
    e("v_mul_lo_u32 v5, v5, s35")
    e("v_lshl_add_u32 v12, v4, 4, v5")
    e("v_add_u32 v12, s31, v12        ; vw")
    if attn:
        pass
    e("s_and_b32 s36, s28, 1          ; qb")
    e("s_lshr_b32 s37, s28, 1         ; dh")
    e("v_and_b32 v2, 31, v1")
    e("v_lshrrev_b32 v3, 5, v1        ; hi")
    e("v_lshrrev_b32 v4, 1, v2")
    e("v_and_b32 v4, 7, v4")
    e("v_xor_b32 v4, v4, v3           ; t")
    e("s_lshl_b32 s38, s36, 12        ; qb*32*128")
    e("v_lshlrev_b32 v5, 7, v2")
    e("v_add_u32 v5, s38, v5")
    for kk in range(4):
        e("v_xor_b32 v6, %d, v4"%(kk<<1))
        e("v_lshl_add_u32 v%d, v6, 4, v5"%(16+kk))
        e("v_add_u32 v%d, %d, v%d"%(20+kk, 2*STAGE, 16+kk))
    e("v_lshrrev_b32 v2, 4, v1        ; g")
    e("v_and_b32 v3, 15, v1           ; i")
    e("v_lshrrev_b32 v4, 1, v2        ; g>>1")
    e("v_lshlrev_b32 v4, 3, v4")
    e("v_lshrrev_b32 v5, 2, v3        ; i>>2")
    e("v_add_u32 v4, v4, v5           ; krow0")
    e("v_and_b32 v6, 1, v2")
    e("v_lshlrev_b32 v6, 1, v6        ; (g&1)*2")
    e("v_bfe_u32 v7, v3, 1, 1         ; (i&3)>>1")
    e("v_add_u32 v6, v6, v7")
    e("s_lshl_b32 s38, s37, 3         ; dh*8")
    e("v_add_u32 v6, s38, v6          ; chunk")
    e("v_lshlrev_b32 v5, 2, v5")
    e("v_xor_b32 v6, v6, v5           ; slot")
    e("v_lshlrev_b32 v6, 4, v6")
    e("v_and_b32 v7, 1, v3")
    e("v_lshl_add_u32 v6, v7, 3, v6")
    e("v_lshl_add_u32 v6, v4, 8, v6")
    e("v_add_u32 v24, 8192, v6        ; j=0 lo")
    e("v_xor_b32 v25, 64, v24         ; j=1 lo")
    e("v_add_u32 v26, %d, v24"%(2*STAGE))
    e("v_add_u32 v27, %d, v25"%(2*STAGE))
    for r in range(64,96): e("v_mov_b32 v%d, 0"%r)

def dma_tile(kt, SW):
    st=(kt%NST)*STAGE
    for ee in range(2):
        e("s_add_u32 m0, s32, %d"%(st+ee*1024))
        e("s_mov_b32 s40, %d"%(kt*128))
        e("buffer_load_dwordx4 v%d, s[8:11], s40 offen lds"%(10+ee))
    for jj in range(4):
        e("s_add_u32 m0, s33, %d"%(st+8192+jj*1024))
        e("s_mov_b32 s40, %d"%((kt*64+jj*4)*SW))
        e("buffer_load_dwordx4 v12, s[12:15], s40 offen lds")

def gemm_loop(SW, npre):
    for kt in range(2): dma_tile(kt,SW)
    for kt in range(16):
        rem=min(15-kt,1)
        e("s_waitcnt vmcnt(%d)"%(rem*6))
        e("s_barrier")
        if kt+2<16: dma_tile(kt+2,SW)
        st=kt%NST; hi=st>>1; off=(st&1)*STAGE
        def rd(kk,p):
            b=32+12*p
            e("ds_read_b128 v[%d:%d], v%d offset:%d"%(b,b+3,16+4*hi+kk,off))
            for j in range(2):
                for t in range(2):
                    e("ds_read_b64_tr_b16 v[%d:%d], v%d offset:%d"%(b+4+4*j+2*t,b+5+4*j+2*t,24+2*hi+j,off+(kk*16+t*4)*256))
        rd(0,0)
        for kk in range(4):
            p=kk&1
            if kk<3: rd(kk+1,p^1)
            e("s_waitcnt lgkmcnt(%d)"%(5 if kk<3 else 0))
            b=32+12*p
            for j in range(2):
                e("v_mfma_f32_32x32x16_bf16 v[%d:%d], v[%d:%d], v[%d:%d], v[%d:%d]"%(64+16*j,79+16*j,b+4+4*j,b+7+4*j,b,b+3,64+16*j,79+16*j))

def srd(d, src, nbytes):
    e("s_mov_b32 s%d, s%d"%(d,src)); e("s_mov_b32 s%d, s%d"%(d+1,src+1))
    e("s_mov_b32 s%d, %d"%(d+2,nbytes)); e("s_mov_b32 s%d, 0x00020000"%(d+3))

def header(name):
    L.append(".globl %s"%name); L.append(".p2align 8"); L.append(".type %s,@function"%name); lab(name)

header("mha_qattn_kernel")
e("s_cmp_ge_u32 s2, 256"); e("s_cbranch_scc1 L1_done")
e("s_load_dwordx4 s[44:47], s[0:1], 0     ; x, k")
e("s_load_dwordx4 s[48:51], s[0:1], 16    ; v, wq")
e("s_load_dwordx2 s[52:53], s[0:1], 56    ; ws")
e("s_and_b32 s3, s2, 7"); e("s_lshl_b32 s3, s3, 2"); e("s_bfe_u32 s4, s2, 0x20003"); e("s_add_u32 s3, s3, s4   ; head")
e("s_lshr_b32 s4, s2, 5   ; rb")
e("s_waitcnt lgkmcnt(0)")
srd(8,44,1048576); srd(12,50,8388608); srd(16,46,4194304); srd(20,48,4194304); srd(24,52,4194304)
e("s_lshl_b32 s30, s4, 17     ; rb*64*2048")
e("s_lshl_b32 s31, s3, 8      ; head*128*2")
gemm_core(2048,8192,True)
e("v_lshrrev_b32 v2, 4, v1        ; i>>4 (key&3)")
e("v_and_b32 v3, 15, v1           ; slot")
e("s_lshl_b32 s38, s4, 1"); e("s_add_u32 s38, s38, s37")
e("s_lshl_b32 s38, s38, 5"); e("s_add_u32 s38, s38, s3"); e("s_lshl_b32 s38, s38, 13   ; (b*32+h)*8192")
e("s_lshl_b32 s39, s28, 13"); e("s_add_u32 s39, s39, %d    ; lds dest: KV + w*8192"%KV)
e("s_cmp_eq_u32 s36, 0"); e("s_cbranch_scc0 L1_vload")
for j in range(8):
    e("v_add_u32 v4, %d, v2"%((4*j)&15))
    e("v_xor_b32 v4, v3, v4")
    e("v_lshlrev_b32 v4, 4, v4")
    e("v_lshl_add_u32 v4, v2, 8, v4")
    e("s_add_u32 m0, s39, %d"%(j*1024))
    e("s_add_u32 s40, s38, %d"%(j*1024))
    e("buffer_load_dwordx4 v4, s[16:19], s40 offen lds")
e("s_branch L1_kvdone")
lab("L1_vload")
e("v_lshlrev_b32 v4, 2, v2"); e("v_xor_b32 v4, v3, v4"); e("v_lshlrev_b32 v4, 4, v4"); e("v_lshl_add_u32 v4, v2, 8, v4")
for j in range(8):
    e("s_add_u32 m0, s39, %d"%(j*1024))
    e("s_add_u32 s40, s38, %d"%(j*1024))
    e("buffer_load_dwordx4 v4, s[20:23], s40 offen lds")
lab("L1_kvdone")
gemm_loop(8192,8)
e("s_nop 7"); e("s_nop 7")
for j in range(2):
    for s in range(2):
        for c in range(4):
            r=64+16*j+8*s+2*c
            e("v_cvt_pk_bf16_f32 v%d, v%d, v%d"%(32+8*j+4*s+c,r,r+1))
e("v_and_b32 v2, 31, v1"); e("v_lshrrev_b32 v3, 5, v1   ; h")
e("v_and_b32 v4, 15, v2"); e("s_lshl_b32 s38, s37, 3"); e("v_xor_b32 v4, s38, v4"); e("v_lshlrev_b32 v4, 4, v4")
e("v_lshl_add_u32 v4, v2, 8, v4"); e("v_lshl_add_u32 v4, v3, 3, v4")
e("s_lshl_b32 s38, s36, 14"); e("s_add_u32 s38, s38, %d"%KV); e("v_add_u32 v4, s38, v4")
for c in range(8):
    e("v_xor_b32 v5, %d, v4"%(c*16))
    e("ds_read_b64 v[%d:%d], v5"%(64+2*c,65+2*c))
for r in range(16): e("v_mov_b32 v%d, 0"%(96+r))
e("s_waitcnt lgkmcnt(0)")
for st in range(4):
    e("v_mfma_f32_32x32x16_bf16 v[96:111], v[%d:%d], v[%d:%d], v[96:111]"%(64+4*st,67+4*st,32+4*st,35+4*st))
e("s_nop 7"); e("s_nop 7")
e("s_barrier")
e("s_lshl_b32 s38, s28, 12"); e("v_lshlrev_b32 v5, 6, v1"); e("v_add_u32 v6, s38, v5")
for i in range(4): e("ds_write_b128 v6, v[%d:%d] offset:%d"%(96+4*i,99+4*i,16*i))
e("s_xor_b32 s38, s28, 2"); e("s_lshl_b32 s38, s38, 12"); e("v_add_u32 v6, s38, v5")
e("s_waitcnt lgkmcnt(0)"); e("s_barrier")
for i in range(4): e("ds_read_b128 v[%d:%d], v6 offset:%d"%(64+4*i,67+4*i,16*i))
e("s_waitcnt lgkmcnt(0)")
e("s_mov_b32 s38, 0x3db504f3   ; 128^-0.5")
e("s_mov_b32 s39, 0x3fb8aa3b   ; log2e")
e("s_mov_b32 s41, 0xffff0000")
for r in range(16): e("v_add_f32 v%d, v%d, v%d"%(96+r,96+r,64+r))
for r in range(0,16,2):
    e("v_cvt_pk_bf16_f32 v5, v%d, v%d"%(96+r,97+r))
    e("v_lshlrev_b32 v6, 16, v5"); e("v_and_b32 v7, s41, v5")
    e("v_mul_f32 v6, s38, v6"); e("v_mul_f32 v7, s38, v7")
    e("v_cvt_pk_bf16_f32 v5, v6, v7")
    e("v_lshlrev_b32 v%d, 16, v5"%(96+r)); e("v_and_b32 v%d, s41, v5"%(97+r))
e("v_max_f32 v5, v96, v97")
for r in range(2,16): e("v_max_f32 v5, v5, v%d"%(96+r))
e("v_mov_b32 v6, v5"); e("s_nop 1"); e("v_permlane32_swap_b32 v5, v6"); e("v_max_f32 v5, v5, v6")
for r in range(16):
    e("v_sub_f32 v%d, v%d, v5"%(96+r,96+r)); e("v_mul_f32 v%d, s39, v%d"%(96+r,96+r)); e("v_exp_f32 v%d, v%d"%(96+r,96+r))
e("s_nop 0")
e("v_add_f32 v5, v96, v97")
for r in range(2,16): e("v_add_f32 v5, v5, v%d"%(96+r))
e("v_mov_b32 v6, v5"); e("s_nop 1"); e("v_permlane32_swap_b32 v5, v6"); e("v_add_f32 v5, v5, v6")
e("v_rcp_f32 v5, v5"); e("s_nop 0")
for r in range(16): e("v_mul_f32 v%d, v%d, v5"%(96+r,96+r))
for c in range(8): e("v_cvt_pk_bf16_f32 v%d, v%d, v%d"%(32+c,96+2*c,97+2*c))
e("v_lshrrev_b32 v2, 4, v1"); e("v_and_b32 v3, 15, v1")
e("v_lshrrev_b32 v4, 1, v2"); e("v_lshlrev_b32 v4, 2, v4"); e("v_lshrrev_b32 v5, 2, v3"); e("v_add_u32 v4, v4, v5   ; key")
e("v_and_b32 v6, 1, v2"); e("v_lshlrev_b32 v6, 1, v6"); e("v_bfe_u32 v7, v3, 1, 1"); e("v_add_u32 v6, v6, v7")
e("s_lshl_b32 s38, s37, 3"); e("v_add_u32 v6, s38, v6"); e("v_lshlrev_b32 v5, 2, v5"); e("v_xor_b32 v6, v6, v5")
e("v_lshlrev_b32 v6, 4, v6"); e("v_and_b32 v7, 1, v3"); e("v_lshl_add_u32 v6, v7, 3, v6"); e("v_lshl_add_u32 v6, v4, 8, v6")
e("s_lshl_b32 s38, s36, 14"); e("s_add_u32 s38, s38, %d"%(KV+8192)); e("v_add_u32 v6, s38, v6"); e("v_xor_b32 v7, 64, v6")
for j in range(2):
    for s in range(2):
        for t in range(2):
            r=64+8*j+4*s+2*t
            e("ds_read_b64_tr_b16 v[%d:%d], v%d offset:%d"%(r,r+1,6+j,(16*s+8*t)*256))
for r in range(32): e("v_mov_b32 v%d, 0"%(96+r))
e("s_waitcnt lgkmcnt(0)")
for j in range(2):
    for s in range(2):
        r=64+8*j+4*s
        e("v_mfma_f32_32x32x16_bf16 v[%d:%d], v[%d:%d], v[%d:%d], v[%d:%d]"%(96+16*j,111+16*j,r,r+3,32+4*s,35+4*s,96+16*j,111+16*j))
e("v_and_b32 v2, 31, v1"); e("v_lshrrev_b32 v3, 5, v1")
e("s_lshl_b32 s38, s4, 6"); e("s_lshl_b32 s39, s36, 5"); e("s_add_u32 s38, s38, s39"); e("v_add_u32 v2, s38, v2")
e("v_lshlrev_b32 v2, 13, v2"); e("v_lshl_add_u32 v2, v3, 3, v2")
e("s_lshl_b32 s38, s3, 8"); e("s_lshl_b32 s39, s37, 7"); e("s_add_u32 s38, s38, s39"); e("v_add_u32 v2, s38, v2")
e("s_nop 7"); e("s_nop 3")
for j in range(2):
    for q4 in range(4):
        r=96+16*j+4*q4
        e("v_cvt_pk_bf16_f32 v%d, v%d, v%d"%(r,r,r+1)); e("v_cvt_pk_bf16_f32 v%d, v%d, v%d"%(r+1,r+2,r+3))
        e("buffer_store_dwordx2 v[%d:%d], v2, s[24:27], 0 offen offset:%d"%(r,r+1,j*64+q4*16))
lab("L1_done"); e("s_endpgm")

header("mha_oproj_kernel")
e("s_cmp_ge_u32 s2, 256"); e("s_cbranch_scc1 L2_done")
e("s_load_dwordx2 s[44:45], s[0:1], 32    ; wo")
e("s_load_dwordx2 s[52:53], s[0:1], 56    ; ws")
e("s_bfe_u32 s5, s2, 0x20001   ; split"); e("s_and_b32 s3, s2, 1"); e("s_lshl_b32 s3, s3, 2"); e("s_bfe_u32 s4, s2, 0x20003"); e("s_add_u32 s3, s3, s4   ; nb")
e("s_lshr_b32 s4, s2, 5   ; rb")
e("s_waitcnt lgkmcnt(0)")
srd(8,52,4194304); srd(12,44,8388608)
e("s_add_u32 s52, s52, 0x400000"); e("s_addc_u32 s53, s53, 0")
srd(24,52,8388608)
e("s_lshl_b32 s30, s4, 19"); e("s_lshl_b32 s38, s5, 11"); e("s_add_u32 s30, s30, s38")
e("s_lshl_b32 s31, s5, 21"); e("s_lshl_b32 s38, s3, 8"); e("s_add_u32 s31, s31, s38")
gemm_core(8192,2048,False)
gemm_loop(2048,0)
e("v_and_b32 v2, 31, v1"); e("v_lshrrev_b32 v3, 5, v1")
e("s_lshl_b32 s38, s4, 6"); e("s_lshl_b32 s39, s36, 5"); e("s_add_u32 s38, s38, s39"); e("v_add_u32 v2, s38, v2")
e("v_lshlrev_b32 v2, 12, v2"); e("v_lshl_add_u32 v2, v3, 4, v2")
e("s_lshl_b32 s38, s5, 21"); e("s_lshl_b32 s39, s3, 9"); e("s_add_u32 s38, s38, s39"); e("s_lshl_b32 s39, s37, 8"); e("s_add_u32 s38, s38, s39"); e("v_add_u32 v2, s38, v2")
e("s_nop 7"); e("s_nop 3")
for j in range(2):
    for q4 in range(4):
        r=64+16*j+4*q4
        e("buffer_store_dwordx4 v[%d:%d], v2, s[24:27], 0 offen offset:%d"%(r,r+3,j*128+q4*32))
lab("L2_done"); e("s_endpgm")

header("mha_reduce_kernel")
e("s_cmp_ge_u32 s2, 256"); e("s_cbranch_scc1 L3_done")
e("s_load_dwordx2 s[44:45], s[0:1], 40    ; out")
e("s_load_dwordx2 s[52:53], s[0:1], 56    ; ws")
e("s_lshl_b32 s3, s2, 8"); e("v_add_u32 v1, s3, v0")
e("s_waitcnt lgkmcnt(0)")
e("s_add_u32 s52, s52, 0x400000"); e("s_addc_u32 s53, s53, 0")
srd(8,52,8388608); srd(12,44,1048576)
e("v_lshlrev_b32 v2, 5, v1"); e("v_lshlrev_b32 v3, 4, v1")
for s in range(4):
    e("s_mov_b32 s4, %d"%(s<<21))
    e("buffer_load_dwordx4 v[%d:%d], v2, s[8:11], s4 offen"%(8+8*s,11+8*s))
    e("buffer_load_dwordx4 v[%d:%d], v2, s[8:11], s4 offen offset:16"%(12+8*s,15+8*s))
e("s_waitcnt vmcnt(0)")
for i in range(8):
    e("v_add_f32 v%d, v%d, v%d"%(8+i,8+i,16+i)); e("v_add_f32 v%d, v%d, v%d"%(24+i,24+i,32+i)); e("v_add_f32 v%d, v%d, v%d"%(8+i,8+i,24+i))
for i in range(4): e("v_cvt_pk_bf16_f32 v%d, v%d, v%d"%(40+i,8+2*i,9+2*i))
e("buffer_store_dwordx4 v[40:43], v3, s[12:15], 0 offen")
lab("L3_done"); e("s_endpgm")

def kd(name,vg):
    return """.amdhsa_kernel %s
  .amdhsa_next_free_vgpr %d
  .amdhsa_next_free_sgpr 64
  .amdhsa_accum_offset %d
  .amdhsa_group_segment_fixed_size 0
  .amdhsa_kernarg_size 64
  .amdhsa_user_sgpr_count 2
  .amdhsa_user_sgpr_kernarg_segment_ptr 1
  .amdhsa_system_sgpr_workgroup_id_x 1
.end_amdhsa_kernel
"""%(name,vg,vg)
out="""; MHA block: Q-proj+attention (kernel 1), split-K out-proj (kernel 2), reduce (kernel 3)
; @launch kernel=mha_qattn_kernel grid=(256,1,1) block=(256,1,1) lds=131072
; @launch kernel=mha_oproj_kernel grid=(256,1,1) block=(256,1,1) lds=98304
; @launch kernel=mha_reduce_kernel grid=(256,1,1) block=(256,1,1) lds=0
.amdgcn_target "amdgcn-amd-amdhsa--gfx950"
.text
"""+"\n".join(L)+"\n.section .rodata,\"a\"\n.p2align 6\n"+kd("mha_qattn_kernel",128)+".p2align 6\n"+kd("mha_oproj_kernel",128)+".p2align 6\n"+kd("mha_reduce_kernel",64)
open("standalone__mha_block_cached__near_ridge.s","w").write(out)
```

```python
import sys
L=[]
def e(s): L.append("    "+s)
def lab(s): L.append(s+":")

STAGE=24576; NST=4; KV=NST*STAGE

def gemm_core(SA, SW, attn):
    e("v_and_b32 v1, 63, v0")
    e("v_lshrrev_b32 v2, 6, v0")
    e("s_nop 0")
    e("v_readfirstlane_b32 s28, v2")
    e("s_nop 3")
    e("s_lshl_b32 s32, s28, 11      ; w*2048 (X lds)")
    e("s_lshl_b32 s33, s28, 12      ; w*4096 (W lds)")
    e("v_lshrrev_b32 v2, 3, v1       ; i>>3")
    e("v_lshrrev_b32 v3, 4, v1       ; i>>4")
    e("v_and_b32 v4, 7, v1")
    e("v_xor_b32 v4, v4, v3          ; (i&7)^(i>>4)")
    e("s_lshl_b32 s34, s28, 4        ; 16w")
    e("v_add_u32 v2, s34, v2")
    e("s_mov_b32 s35, %d"%SA)
    e("v_mul_lo_u32 v2, v2, s35")
    e("v_lshl_add_u32 v10, v4, 4, v2   ; vx0")
    e("v_add_u32 v10, s30, v10")
    e("v_xor_b32 v11, 64, v10")
    e("v_add_u32 v11, %d, v11         ; vx1"%(8*SA))
    e("v_and_b32 v4, 15, v1")
    e("v_lshlrev_b32 v5, 2, v3")
    e("v_xor_b32 v4, v4, v5          ; (i&15)^((i>>4)<<2)")
    e("s_lshl_b32 s34, s28, 4")
    e("v_add_u32 v5, s34, v3")
    e("s_mov_b32 s35, %d"%SW)
    e("v_mul_lo_u32 v5, v5, s35")
    e("v_lshl_add_u32 v12, v4, 4, v5")
    e("v_add_u32 v12, s31, v12        ; vw")
    if attn:
        pass
    e("s_and_b32 s36, s28, 1          ; qb")
    e("s_lshr_b32 s37, s28, 1         ; dh")
    e("v_and_b32 v2, 31, v1")
    e("v_lshrrev_b32 v3, 5, v1        ; hi")
    e("v_lshrrev_b32 v4, 1, v2")
    e("v_and_b32 v4, 7, v4")
    e("v_xor_b32 v4, v4, v3           ; t")
    e("s_lshl_b32 s38, s36, 12        ; qb*32*128")
    e("v_lshlrev_b32 v5, 7, v2")
    e("v_add_u32 v5, s38, v5")
    for kk in range(4):
        e("v_xor_b32 v6, %d, v4"%(kk<<1))
        e("v_lshl_add_u32 v%d, v6, 4, v5"%(16+kk))
        e("v_add_u32 v%d, %d, v%d"%(20+kk, 2*STAGE, 16+kk))
    e("v_lshrrev_b32 v2, 4, v1        ; g")
    e("v_and_b32 v3, 15, v1           ; i")
    e("v_lshrrev_b32 v4, 1, v2        ; g>>1")
    e("v_lshlrev_b32 v4, 3, v4")
    e("v_lshrrev_b32 v5, 2, v3        ; i>>2")
    e("v_add_u32 v4, v4, v5           ; krow0")
    e("v_and_b32 v6, 1, v2")
    e("v_lshlrev_b32 v6, 1, v6        ; (g&1)*2")
    e("v_bfe_u32 v7, v3, 1, 1         ; (i&3)>>1")
    e("v_add_u32 v6, v6, v7")
    e("s_lshl_b32 s38, s37, 3         ; dh*8")
    e("v_add_u32 v6, s38, v6          ; chunk")
    e("v_lshlrev_b32 v5, 2, v5")
    e("v_xor_b32 v6, v6, v5           ; slot")
    e("v_lshlrev_b32 v6, 4, v6")
    e("v_and_b32 v7, 1, v3")
    e("v_lshl_add_u32 v6, v7, 3, v6")
    e("v_lshl_add_u32 v6, v4, 8, v6")
    e("v_add_u32 v24, 8192, v6        ; j=0 lo")
    e("v_xor_b32 v25, 64, v24         ; j=1 lo")
    e("v_add_u32 v26, %d, v24"%(2*STAGE))
    e("v_add_u32 v27, %d, v25"%(2*STAGE))
    for r in range(64,96): e("v_mov_b32 v%d, 0"%r)

def dma_tile(kt, SW):
    st=(kt%NST)*STAGE
    for ee in range(2):
        e("s_add_u32 m0, s32, %d"%(st+ee*1024))
        e("s_mov_b32 s40, %d"%(kt*128))
        e("buffer_load_dwordx4 v%d, s[8:11], s40 offen lds"%(10+ee))
    for jj in range(4):
        e("s_add_u32 m0, s33, %d"%(st+8192+jj*1024))
        e("s_mov_b32 s40, %d"%((kt*64+jj*4)*SW))
        e("buffer_load_dwordx4 v12, s[12:15], s40 offen lds")

def gemm_loop(SW, npre):
    for kt in range(3): dma_tile(kt,SW)
    for kt in range(16):
        rem=min(15-kt,2)
        e("s_waitcnt vmcnt(%d)"%(rem*6))
        e("s_barrier")
        if kt+3<16: dma_tile(kt+3,SW)
        st=kt%NST; hi=st>>1; off=(st&1)*STAGE
        def rd(kk,p):
            b=32+12*p
            e("ds_read_b128 v[%d:%d], v%d offset:%d"%(b,b+3,16+4*hi+kk,off))
            for j in range(2):
                for t in range(2):
                    e("ds_read_b64_tr_b16 v[%d:%d], v%d offset:%d"%(b+4+4*j+2*t,b+5+4*j+2*t,24+2*hi+j,off+(kk*16+t*4)*256))
        rd(0,0)
        for kk in range(4):
            p=kk&1
            if kk<3: rd(kk+1,p^1)
            e("s_waitcnt lgkmcnt(%d)"%(5 if kk<3 else 0))
            b=32+12*p
            for j in range(2):
                e("v_mfma_f32_32x32x16_bf16 v[%d:%d], v[%d:%d], v[%d:%d], v[%d:%d]"%(64+16*j,79+16*j,b+4+4*j,b+7+4*j,b,b+3,64+16*j,79+16*j))

def srd(d, src, nbytes):
    e("s_mov_b32 s%d, s%d"%(d,src)); e("s_mov_b32 s%d, s%d"%(d+1,src+1))
    e("s_mov_b32 s%d, %d"%(d+2,nbytes)); e("s_mov_b32 s%d, 0x00020000"%(d+3))

def header(name):
    L.append(".globl %s"%name); L.append(".p2align 8"); L.append(".type %s,@function"%name); lab(name)

header("mha_qattn_kernel")
e("s_cmp_ge_u32 s2, 256"); e("s_cbranch_scc1 L1_done")
e("s_load_dwordx4 s[44:47], s[0:1], 0     ; x, k")
e("s_load_dwordx4 s[48:51], s[0:1], 16    ; v, wq")
e("s_load_dwordx2 s[52:53], s[0:1], 56    ; ws")
e("s_and_b32 s3, s2, 3"); e("s_lshl_b32 s3, s3, 3"); e("s_bfe_u32 s4, s2, 0x30003"); e("s_add_u32 s3, s3, s4   ; head")
e("s_bfe_u32 s4, s2, 0x10002"); e("s_lshl_b32 s4, s4, 2"); e("s_lshr_b32 s5, s2, 6"); e("s_add_u32 s4, s4, s5")
e("s_waitcnt lgkmcnt(0)")
srd(8,44,1048576); srd(12,50,8388608); srd(16,46,4194304); srd(20,48,4194304); srd(24,52,4194304)
e("s_lshl_b32 s30, s4, 17     ; rb*64*2048")
e("s_lshl_b32 s31, s3, 8      ; head*128*2")
gemm_core(2048,8192,True)
e("v_lshrrev_b32 v2, 4, v1        ; i>>4 (key&3)")
e("v_and_b32 v3, 15, v1           ; slot")
e("s_lshl_b32 s38, s4, 1"); e("s_add_u32 s38, s38, s37")
e("s_lshl_b32 s38, s38, 5"); e("s_add_u32 s38, s38, s3"); e("s_lshl_b32 s38, s38, 13   ; (b*32+h)*8192")
e("s_lshl_b32 s39, s28, 13"); e("s_add_u32 s39, s39, %d    ; lds dest: KV + w*8192"%KV)
e("s_cmp_eq_u32 s36, 0"); e("s_cbranch_scc0 L1_vload")
for j in range(8):
    e("v_add_u32 v4, %d, v2"%((4*j)&15))
    e("v_xor_b32 v4, v3, v4")
    e("v_lshlrev_b32 v4, 4, v4")
    e("v_lshl_add_u32 v4, v2, 8, v4")
    e("s_add_u32 m0, s39, %d"%(j*1024))
    e("s_add_u32 s40, s38, %d"%(j*1024))
    e("buffer_load_dwordx4 v4, s[16:19], s40 offen lds")
e("s_branch L1_kvdone")
lab("L1_vload")
e("v_lshlrev_b32 v4, 2, v2"); e("v_xor_b32 v4, v3, v4"); e("v_lshlrev_b32 v4, 4, v4"); e("v_lshl_add_u32 v4, v2, 8, v4")
for j in range(8):
    e("s_add_u32 m0, s39, %d"%(j*1024))
    e("s_add_u32 s40, s38, %d"%(j*1024))
    e("buffer_load_dwordx4 v4, s[20:23], s40 offen lds")
lab("L1_kvdone")
gemm_loop(8192,8)
e("s_nop 7"); e("s_nop 7")
for j in range(2):
    for s in range(2):
        for c in range(4):
            r=64+16*j+8*s+2*c
            e("v_cvt_pk_bf16_f32 v%d, v%d, v%d"%(32+8*j+4*s+c,r,r+1))
e("v_and_b32 v2, 31, v1"); e("v_lshrrev_b32 v3, 5, v1   ; h")
e("v_and_b32 v4, 15, v2"); e("s_lshl_b32 s38, s37, 3"); e("v_xor_b32 v4, s38, v4"); e("v_lshlrev_b32 v4, 4, v4")
e("v_lshl_add_u32 v4, v2, 8, v4"); e("v_lshl_add_u32 v4, v3, 3, v4")
e("s_lshl_b32 s38, s36, 14"); e("s_add_u32 s38, s38, %d"%KV); e("v_add_u32 v4, s38, v4")
for c in range(8):
    e("v_xor_b32 v5, %d, v4"%(c*16))
    e("ds_read_b64 v[%d:%d], v5"%(64+2*c,65+2*c))
for r in range(16): e("v_mov_b32 v%d, 0"%(96+r))
e("s_waitcnt lgkmcnt(0)")
for st in range(4):
    e("v_mfma_f32_32x32x16_bf16 v[96:111], v[%d:%d], v[%d:%d], v[96:111]"%(64+4*st,67+4*st,32+4*st,35+4*st))
e("s_nop 7"); e("s_nop 7")
e("s_barrier")
e("s_lshl_b32 s38, s28, 12"); e("v_lshlrev_b32 v5, 6, v1"); e("v_add_u32 v6, s38, v5")
for i in range(4): e("ds_write_b128 v6, v[%d:%d] offset:%d"%(96+4*i,99+4*i,16*i))
e("s_xor_b32 s38, s28, 2"); e("s_lshl_b32 s38, s38, 12"); e("v_add_u32 v6, s38, v5")
e("s_waitcnt lgkmcnt(0)"); e("s_barrier")
for i in range(4): e("ds_read_b128 v[%d:%d], v6 offset:%d"%(64+4*i,67+4*i,16*i))
e("s_waitcnt lgkmcnt(0)")
e("s_mov_b32 s38, 0x3db504f3   ; 128^-0.5")
e("s_mov_b32 s39, 0x3fb8aa3b   ; log2e")
e("s_mov_b32 s41, 0xffff0000")
for r in range(16): e("v_add_f32 v%d, v%d, v%d"%(96+r,96+r,64+r))
for r in range(0,16,2):
    e("v_cvt_pk_bf16_f32 v5, v%d, v%d"%(96+r,97+r))
    e("v_lshlrev_b32 v6, 16, v5"); e("v_and_b32 v7, s41, v5")
    e("v_mul_f32 v6, s38, v6"); e("v_mul_f32 v7, s38, v7")
    e("v_cvt_pk_bf16_f32 v5, v6, v7")
    e("v_lshlrev_b32 v%d, 16, v5"%(96+r)); e("v_and_b32 v%d, s41, v5"%(97+r))
e("v_max_f32 v5, v96, v97")
for r in range(2,16): e("v_max_f32 v5, v5, v%d"%(96+r))
e("v_mov_b32 v6, v5"); e("s_nop 1"); e("v_permlane32_swap_b32 v5, v6"); e("v_max_f32 v5, v5, v6")
for r in range(16):
    e("v_sub_f32 v%d, v%d, v5"%(96+r,96+r)); e("v_mul_f32 v%d, s39, v%d"%(96+r,96+r)); e("v_exp_f32 v%d, v%d"%(96+r,96+r))
e("s_nop 0")
e("v_add_f32 v5, v96, v97")
for r in range(2,16): e("v_add_f32 v5, v5, v%d"%(96+r))
e("v_mov_b32 v6, v5"); e("s_nop 1"); e("v_permlane32_swap_b32 v5, v6"); e("v_add_f32 v5, v5, v6")
e("v_rcp_f32 v5, v5"); e("s_nop 0")
for r in range(16): e("v_mul_f32 v%d, v%d, v5"%(96+r,96+r))
for c in range(8): e("v_cvt_pk_bf16_f32 v%d, v%d, v%d"%(32+c,96+2*c,97+2*c))
e("v_lshrrev_b32 v2, 4, v1"); e("v_and_b32 v3, 15, v1")
e("v_lshrrev_b32 v4, 1, v2"); e("v_lshlrev_b32 v4, 2, v4"); e("v_lshrrev_b32 v5, 2, v3"); e("v_add_u32 v4, v4, v5   ; key")
e("v_and_b32 v6, 1, v2"); e("v_lshlrev_b32 v6, 1, v6"); e("v_bfe_u32 v7, v3, 1, 1"); e("v_add_u32 v6, v6, v7")
e("s_lshl_b32 s38, s37, 3"); e("v_add_u32 v6, s38, v6"); e("v_lshlrev_b32 v5, 2, v5"); e("v_xor_b32 v6, v6, v5")
e("v_lshlrev_b32 v6, 4, v6"); e("v_and_b32 v7, 1, v3"); e("v_lshl_add_u32 v6, v7, 3, v6"); e("v_lshl_add_u32 v6, v4, 8, v6")
e("s_lshl_b32 s38, s36, 14"); e("s_add_u32 s38, s38, %d"%(KV+8192)); e("v_add_u32 v6, s38, v6"); e("v_xor_b32 v7, 64, v6")
for j in range(2):
    for s in range(2):
        for t in range(2):
            r=64+8*j+4*s+2*t
            e("ds_read_b64_tr_b16 v[%d:%d], v%d offset:%d"%(r,r+1,6+j,(16*s+8*t)*256))
for r in range(32): e("v_mov_b32 v%d, 0"%(96+r))
e("s_waitcnt lgkmcnt(0)")
for j in range(2):
    for s in range(2):
        r=64+8*j+4*s
        e("v_mfma_f32_32x32x16_bf16 v[%d:%d], v[%d:%d], v[%d:%d], v[%d:%d]"%(96+16*j,111+16*j,r,r+3,32+4*s,35+4*s,96+16*j,111+16*j))
e("v_and_b32 v2, 31, v1"); e("v_lshrrev_b32 v3, 5, v1")
e("s_lshl_b32 s38, s4, 6"); e("s_lshl_b32 s39, s36, 5"); e("s_add_u32 s38, s38, s39"); e("v_add_u32 v2, s38, v2")
e("v_lshlrev_b32 v2, 13, v2"); e("v_lshl_add_u32 v2, v3, 3, v2")
e("s_lshl_b32 s38, s3, 8"); e("s_lshl_b32 s39, s37, 7"); e("s_add_u32 s38, s38, s39"); e("v_add_u32 v2, s38, v2")
e("s_nop 7"); e("s_nop 3")
for j in range(2):
    for q4 in range(4):
        r=96+16*j+4*q4
        e("v_cvt_pk_bf16_f32 v%d, v%d, v%d"%(r,r,r+1)); e("v_cvt_pk_bf16_f32 v%d, v%d, v%d"%(r+1,r+2,r+3))
        e("buffer_store_dwordx2 v[%d:%d], v2, s[24:27], 0 offen offset:%d"%(r,r+1,j*64+q4*16))
lab("L1_done"); e("s_endpgm")

header("mha_oproj_kernel")
e("s_cmp_ge_u32 s2, 256"); e("s_cbranch_scc1 L2_done")
e("s_load_dwordx2 s[44:45], s[0:1], 32    ; wo")
e("s_load_dwordx2 s[52:53], s[0:1], 56    ; ws")
e("s_bfe_u32 s5, s2, 0x20001   ; split"); e("s_and_b32 s3, s2, 1"); e("s_lshl_b32 s3, s3, 2"); e("s_bfe_u32 s4, s2, 0x20003"); e("s_add_u32 s3, s3, s4   ; nb")
e("s_lshr_b32 s4, s2, 5   ; rb")
e("s_waitcnt lgkmcnt(0)")
srd(8,52,4194304); srd(12,44,8388608)
e("s_add_u32 s52, s52, 0x400000"); e("s_addc_u32 s53, s53, 0")
srd(24,52,8388608)
e("s_lshl_b32 s30, s4, 19"); e("s_lshl_b32 s38, s5, 11"); e("s_add_u32 s30, s30, s38")
e("s_lshl_b32 s31, s5, 21"); e("s_lshl_b32 s38, s3, 8"); e("s_add_u32 s31, s31, s38")
gemm_core(8192,2048,False)
gemm_loop(2048,0)
e("v_and_b32 v2, 31, v1"); e("v_lshrrev_b32 v3, 5, v1")
e("s_lshl_b32 s38, s4, 6"); e("s_lshl_b32 s39, s36, 5"); e("s_add_u32 s38, s38, s39"); e("v_add_u32 v2, s38, v2")
e("v_lshlrev_b32 v2, 12, v2"); e("v_lshl_add_u32 v2, v3, 4, v2")
e("s_lshl_b32 s38, s5, 21"); e("s_lshl_b32 s39, s3, 9"); e("s_add_u32 s38, s38, s39"); e("s_lshl_b32 s39, s37, 8"); e("s_add_u32 s38, s38, s39"); e("v_add_u32 v2, s38, v2")
e("s_nop 7"); e("s_nop 3")
for j in range(2):
    for q4 in range(4):
        r=64+16*j+4*q4
        e("buffer_store_dwordx4 v[%d:%d], v2, s[24:27], 0 offen offset:%d"%(r,r+3,j*128+q4*32))
lab("L2_done"); e("s_endpgm")

header("mha_reduce_kernel")
e("s_cmp_ge_u32 s2, 256"); e("s_cbranch_scc1 L3_done")
e("s_load_dwordx2 s[44:45], s[0:1], 40    ; out")
e("s_load_dwordx2 s[52:53], s[0:1], 56    ; ws")
e("s_lshl_b32 s3, s2, 8"); e("v_add_u32 v1, s3, v0")
e("s_waitcnt lgkmcnt(0)")
e("s_add_u32 s52, s52, 0x400000"); e("s_addc_u32 s53, s53, 0")
srd(8,52,8388608); srd(12,44,1048576)
e("v_lshlrev_b32 v2, 5, v1"); e("v_lshlrev_b32 v3, 4, v1")
for s in range(4):
    e("s_mov_b32 s4, %d"%(s<<21))
    e("buffer_load_dwordx4 v[%d:%d], v2, s[8:11], s4 offen"%(8+8*s,11+8*s))
    e("buffer_load_dwordx4 v[%d:%d], v2, s[8:11], s4 offen offset:16"%(12+8*s,15+8*s))
e("s_waitcnt vmcnt(0)")
for i in range(8):
    e("v_add_f32 v%d, v%d, v%d"%(8+i,8+i,16+i)); e("v_add_f32 v%d, v%d, v%d"%(24+i,24+i,32+i)); e("v_add_f32 v%d, v%d, v%d"%(8+i,8+i,24+i))
for i in range(4): e("v_cvt_pk_bf16_f32 v%d, v%d, v%d"%(40+i,8+2*i,9+2*i))
e("buffer_store_dwordx4 v[40:43], v3, s[12:15], 0 offen")
lab("L3_done"); e("s_endpgm")

def kd(name,vg):
    return """.amdhsa_kernel %s
  .amdhsa_next_free_vgpr %d
  .amdhsa_next_free_sgpr 64
  .amdhsa_accum_offset %d
  .amdhsa_group_segment_fixed_size 0
  .amdhsa_kernarg_size 64
  .amdhsa_user_sgpr_count 2
  .amdhsa_user_sgpr_kernarg_segment_ptr 1
  .amdhsa_system_sgpr_workgroup_id_x 1
.end_amdhsa_kernel
"""%(name,vg,vg)
out="""; MHA block: Q-proj+attention (kernel 1), split-K out-proj (kernel 2), reduce (kernel 3)
; @launch kernel=mha_qattn_kernel grid=(256,1,1) block=(256,1,1) lds=131072
; @launch kernel=mha_oproj_kernel grid=(256,1,1) block=(256,1,1) lds=98304
; @launch kernel=mha_reduce_kernel grid=(256,1,1) block=(256,1,1) lds=0
.amdgcn_target "amdgcn-amd-amdhsa--gfx950"
.text
"""+"\n".join(L)+"\n.section .rodata,\"a\"\n.p2align 6\n"+kd("mha_qattn_kernel",128)+".p2align 6\n"+kd("mha_oproj_kernel",128)+".p2align 6\n"+kd("mha_reduce_kernel",64)
open("standalone__mha_block_cached__near_ridge.s","w").write(out)
```
